```python
import torch

def _softmax(x, axis=-1):
    return torch.softmax(x, dim=axis)

def _gelu(x):
    return torch.nn.functional.gelu(x, approximate='tanh')

def _silu(x):
    return torch.nn.functional.silu(x)

def _sigmoid(x):
    return torch.sigmoid(x)

def _layernorm(x, axis=-1, eps=1e-05):
    m = x.mean(dim=axis, keepdim=True)
    v = x.var(dim=axis, keepdim=True, unbiased=False)
    return (x - m) / torch.sqrt(v + eps)

def _scatter_add(tgt, idx, src, axis=0):
    return tgt.clone().index_add_(axis, idx, src)

def _segment_sum(src, seg, n):
    out = torch.zeros((n,) + src.shape[1:], dtype=src.dtype)
    return out.index_add_(0, seg, src)

def _pad(x, pw):
    flat = tuple((v for pair in reversed(pw) for v in pair))
    return torch.nn.functional.pad(x, flat)
kernel_name = 'standalone__mm_dit__diffusion'

def setup_inputs():

    _w = lambda a: (lambda t: t.to(torch.bfloat16) if t.is_floating_point() else t)(torch.as_tensor(a))
    B, Ni, Nt, D = (2, 1024, 32, 1152)
    return {'x_img': _w((lambda *s: torch.randn(*s, dtype=torch.bfloat16) * 0.05)(B, Ni, D)), 'x_txt': _w((lambda *s: torch.randn(*s, dtype=torch.bfloat16) * 0.05)(B, Nt, D)), 'c': _w((lambda *s: torch.randn(*s, dtype=torch.bfloat16) * 0.05)(B, D)), 'wqkv_img': _w((lambda *s: torch.randn(*s, dtype=torch.bfloat16) * 0.05)(D, 3 * D)), 'wqkv_txt': _w((lambda *s: torch.randn(*s, dtype=torch.bfloat16) * 0.05)(D, 3 * D)), 'wo_img': _w((lambda *s: torch.randn(*s, dtype=torch.bfloat16) * 0.05)(D, D)), 'wo_txt': _w((lambda *s: torch.randn(*s, dtype=torch.bfloat16) * 0.05)(D, D)), 'wmod_img': _w((lambda *s: torch.randn(*s, dtype=torch.bfloat16) * 0.05)(D, 6 * D)), 'wmod_txt': _w((lambda *s: torch.randn(*s, dtype=torch.bfloat16) * 0.05)(D, 6 * D))}

def reference(x_img, x_txt, c, wqkv_img, wqkv_txt, wo_img, wo_txt, wmod_img, wmod_txt):
    B, Ni, D = x_img.shape
    Nt = x_txt.shape[1]
    mod_i = (_silu(c) @ wmod_img).reshape(B, 6, 1, D)
    mod_t = (_silu(c) @ wmod_txt).reshape(B, 6, 1, D)
    shi, sci, gai = (mod_i[:, 0].clone(), mod_i[:, 1].clone(), mod_i[:, 2].clone())
    sht, sct, gat = (mod_t[:, 0].clone(), mod_t[:, 1].clone(), mod_t[:, 2].clone())
    hi = _layernorm(x_img, axis=-1) * (1 + sci) + shi
    ht = _layernorm(x_txt, axis=-1) * (1 + sct) + sht
    qkvi = hi @ wqkv_img
    qkvt = ht @ wqkv_txt
    qi, ki, vi = (qkvi[..., :D].clone(), qkvi[..., D:2 * D].clone(), qkvi[..., 2 * D:].clone())
    qt, kt, vt = (qkvt[..., :D].clone(), qkvt[..., D:2 * D].clone(), qkvt[..., 2 * D:].clone())
    q = torch.concatenate([qt, qi], axis=1)
    k = torch.concatenate([kt, ki], axis=1)
    v = torch.concatenate([vt, vi], axis=1)
    scores = torch.einsum('bqd,bkd->bqk', q, k) * D ** (-0.5)
    p = _softmax(scores, axis=-1)
    a = torch.einsum('bqk,bkd->bqd', p, v)
    at, ai = (a[:, :Nt].clone(), a[:, Nt:].clone())
    out_i = x_img + gai * (ai @ wo_img)
    out_t = x_txt + gat * (at @ wo_txt)
    return (out_i, out_t)
```

```python
import re

def _regs(tok):
    tok = tok.strip()
    neg = tok.lstrip('-')
    m = re.fullmatch(r'(?:abs\()?\|?([vsa])(\d+)\|?\)?', neg)
    if m: return [(m.group(1), int(m.group(2)))]
    m = re.fullmatch(r'([vsa])\[(\d+):(\d+)\]', neg)
    if m: return [(m.group(1), i) for i in range(int(m.group(2)), int(m.group(3)) + 1)]
    if neg == 'vcc': return [('s', 'vcc')]
    if neg == 'exec': return [('s', 'exec')]
    if neg == 'm0': return [('s', 'm0')]
    return []

TRANS = ('v_exp_f32', 'v_log_f32', 'v_rcp_f32', 'v_rsq_f32', 'v_sqrt_f32', 'v_sin_f32', 'v_cos_f32')

class Ins:
    __slots__ = ('text', 'op', 'dst', 'src', 'kind', 'srcC', 'srcAB', 'dpp', 'states', 'wide', 'lds')
    def __init__(self, text):
        self.text = text
        t = text.split(';')[0].strip()
        parts = t.split(None, 1)
        self.op = op = parts[0]
        rest = parts[1] if len(parts) > 1 else ''
        ops = [o.strip() for o in re.split(r',(?![^\[]*\])', rest)] if rest else []
        if ops:
            last = ops[-1].split()
            mods = last[1:]
            ops[-1] = last[0] if last else ''
        else:
            mods = []
        self.dpp = any(m.startswith(('row_', 'quad_perm', 'wave_')) for m in mods)
        self.dst, self.src, self.srcC, self.srcAB = [], [], [], []
        self.states = 1
        self.wide = False
        self.lds = 'lds' in mods
        R = [_regs(o) for o in ops]
        if op.startswith('v_mfma'):
            self.kind = 'mfma'
            self.dst = R[0]; self.srcAB = R[1] + R[2]; self.srcC = R[3]; self.src = R[1] + R[2] + R[3]
        elif op.startswith('v_'):
            self.kind = 'trans' if op.replace('_e32', '').replace('_e64', '') in TRANS else 'valu'
            if op.startswith(('v_permlane32_swap', 'v_permlane16_swap')):
                self.dst = R[0] + R[1]; self.src = R[0] + R[1]; self.kind = 'permlane'
            elif op.startswith(('v_add_co', 'v_sub_co', 'v_addc_co', 'v_subb_co')):
                self.dst = R[0] + R[1]; self.src = sum(R[2:], [])
            else:
                self.dst = R[0]; self.src = sum(R[1:], [])
                if op.startswith(('v_fmac', 'v_dot2c', 'v_pk_fmac')) or self.dpp: self.src = self.src + R[0]
                if op.startswith('v_cmpx'): self.dst = self.dst + [('s', 'exec')]
        elif op.startswith('ds_'):
            self.kind = 'ds'
            if op.startswith(('ds_read', 'ds_bpermute', 'ds_permute', 'ds_swizzle')) or '_rtn' in op:
                self.dst = R[0]; self.src = sum(R[1:], [])
            else:
                self.src = sum(R, [])
        elif op.startswith(('buffer_', 'global_')):
            self.kind = 'vmem'
            if op.startswith(('buffer_load', 'global_load')) and not self.lds and 'lds' not in op:
                self.dst = R[0]; self.src = sum(R[1:], [])
            else:
                self.src = sum(R, [])
                if 'lds' in op: self.lds = True
                if 'store' in op and ('x4' in op or 'x3' in op):
                    self.wide = R[0] if op.startswith('buffer') else R[1]
            if 'atomic' in op and 'sc0' in mods: self.dst = R[0]
        elif op.startswith('s_'):
            self.kind = 'salu'
            if op == 's_nop': self.states = int(ops[0], 0) + 1
            elif op.startswith(('s_cmp', 's_waitcnt', 's_barrier', 's_cbranch', 's_branch', 's_setprio', 's_endpgm', 's_sleep', 's_bitcmp')):
                self.src = sum(R, [])
            else:
                self.dst = R[0] if R else []; self.src = sum(R[1:], [])
                if 'saveexec' in op: self.dst = self.dst + [('s', 'exec')]
        else:
            raise ValueError('unknown op ' + text)

def passes(op):
    return 8 if '32x32' in op else 4

def need(p, c):
    n = 0
    pv = p.kind in ('valu', 'trans', 'permlane')
    cv = c.kind in ('valu', 'trans', 'permlane')
    pd = set(p.dst)
    if pv:
        vd = {r for r in pd if r[0] != 's'}
        sd = {r for r in pd if r[0] == 's'}
        if vd:
            if c.kind == 'mfma' and vd & set(c.src): n = max(n, 2)
            if c.kind == 'permlane' and vd & set(c.src): n = max(n, 2)
            if cv and c.dpp and vd & set(c.src): n = max(n, 2)
            if c.op.startswith(('v_readfirstlane', 'v_readlane')) and vd & set(c.src): n = max(n, 1)
            if p.kind == 'trans' and cv and c.kind != 'trans' and vd & set(c.src): n = max(n, 1)
            if p.kind == 'trans' and c.kind == 'trans' and vd & set(c.src): n = max(n, 1)
            if ('sdwa' in p.op or 'op_sel' in p.text and not p.op.startswith('v_pk')) and cv and vd & set(c.src + c.dst): n = max(n, 1)
        if sd:
            if cv and sd & set(c.src): n = max(n, 2)
            if cv and c.op.startswith('v_cndmask') and ('s', 'vcc') in sd: n = max(n, 2)
            if c.kind == 'vmem' and sd & set(c.src): n = max(n, 5)
            if c.op.startswith(('v_readlane', 'v_writelane')) and sd & set(c.src): n = max(n, 4)
            if c.kind == 'salu' and sd & set(c.src): n = max(n, 1)
            if ('s', 'exec') in sd:
                if c.kind == 'mfma' or c.kind == 'permlane' or c.op.startswith(('v_readfirstlane', 'v_readlane')): n = max(n, 4)
                if c.dpp: n = max(n, 5)
    if p.kind == 'salu' and ('s', 'm0') in pd and c.kind == 'vmem' and c.lds: n = max(n, 1)
    if p.kind == 'vmem' and p.wide and set(p.wide) & set(c.dst): n = max(n, 2)
    if p.kind == 'mfma':
        ps = passes(p.op)
        full = {4: 8, 8: 12}[ps]
        if c.kind == 'mfma':
            if pd & set(c.srcAB): n = max(n, full)
            if pd & set(c.srcC):
                if not (c.srcC == p.dst and passes(c.op) == ps): n = max(n, {4: 6, 8: 10}[ps])
            elif pd & set(c.dst): n = max(n, {4: 6, 8: 10}[ps])
        else:
            if pd & set(c.src + c.dst): n = max(n, full)
        if cv and set(p.srcC) & set(c.dst): n = max(n, {4: 3, 8: 7}[ps])
    return n

class Asm:
    def __init__(self):
        self.lines = []
        self.nlab = 0
    def __call__(self, text):
        for t in text.strip().split('\n'):
            t = t.strip()
            if not t or t.startswith(';'):
                if t: self.lines.append(('r', '    ' + t))
                continue
            if t.endswith(':'): self.lines.append(('l', t))
            elif t.startswith('.'): self.lines.append(('r', t))
            else: self.lines.append(('i', t))
    def label(self, base='L'):
        self.nlab += 1
        return f'{base}_{self.nlab}'
    def raw(self, text): self.lines.append(('r', text))
    def render(self, verbose=False):
        out = []
        hist = []
        labpos = {}
        nfix = 0
        seq = []
        for kind, t in self.lines:
            seq.append((kind, t, Ins(t) if kind == 'i' else None))
        def req(hist, c):
            dist = 0; worst = 0
            for p in reversed(hist):
                if dist >= 20: break
                n = need(p, c) - dist
                if n > worst: worst = n
                dist += p.states
            return worst
        idx_of_label = {t[:-1]: i for i, (k, t, _) in enumerate(seq) if k == 'l'}
        for i, (kind, t, ins) in enumerate(seq):
            if kind != 'i':
                out.append(t); continue
            w = req(hist, ins)
            if ins.op.startswith(('s_cbranch', 's_branch')):
                tgt = t.split()[1]
                if tgt in idx_of_label:
                    h2 = hist + [ins]; j = idx_of_label[tgt]; acc = 0; extra = 0; h2 = list(h2)
                    while j < len(seq) and acc < 20:
                        if seq[j][0] == 'i':
                            c = seq[j][2]
                            dist = 0
                            for p in reversed(h2):
                                if dist >= 20: break
                                if p in hist:
                                    n = need(p, c) - dist
                                    if n > extra: extra = n
                                dist += p.states
                            h2.append(c); acc += c.states
                            if c.op in ('s_branch', 's_endpgm'): break
                        j += 1
                    w = max(w, extra)
            while w > 0:
                k = min(w, 16)
                nop = Ins(f's_nop {k-1}')
                out.append(f'    s_nop {k-1}'); hist.append(nop); w -= k; nfix += 1
            out.append('    ' + t)
            hist.append(ins)
            if ins.op in ('s_branch', 's_endpgm'): hist = []
            if len(hist) > 40: hist = hist[-30:]
        if verbose: print('hazard nops inserted:', nfix)
        return '\n'.join(out) + '\n'

def kdesc(name, vgpr, sgpr=102):
    acc = (vgpr + 3) // 4 * 4
    return f'''.amdhsa_kernel {name}
  .amdhsa_next_free_vgpr {vgpr}
  .amdhsa_next_free_sgpr {sgpr}
  .amdhsa_accum_offset {acc}
  .amdhsa_group_segment_fixed_size 0
  .amdhsa_kernarg_size 96
  .amdhsa_user_sgpr_count 2
  .amdhsa_user_sgpr_kernarg_segment_ptr 1
  .amdhsa_system_sgpr_workgroup_id_x 1
.end_amdhsa_kernel
'''
```

```python
from gen import *

TABLES = []

def load_table(a, label, dst, tmp):
    a(f's_getpc_b64 s[{tmp}:{tmp+1}]')
    a(f's_add_u32 s{tmp}, s{tmp}, {label}@rel32@lo+4')
    a(f's_addc_u32 s{tmp+1}, s{tmp+1}, {label}@rel32@hi+12')
    a(f's_lshl_b32 s{tmp+2}, s2, 2')
    a(f's_load_dword s{dst}, s[{tmp}:{tmp+1}], s{tmp+2}')

def interleave(mf, others, start=0, every=1.0):
    out = []; k = 0
    for i, m in enumerate(mf):
        out.append(m)
        while k < len(others) and int(start + k*every) <= i:
            out.append(others[k]); k += 1
    out += others[k:]
    return out

def loader_loop(a, tag, NS, NK, L, issue, cnt='s60'):
    for _ in range(NS): issue()
    a(f's_waitcnt vmcnt({(NS-1)*L})')
    a('s_barrier')
    n = NK - NS
    if n > 0:
        a(f's_mov_b32 {cnt}, {n}')
        a(f'{tag}_lloop:')
        a(f's_waitcnt vmcnt({(NS-2)*L})')
        a('s_barrier')
        issue()
        a(f's_sub_u32 {cnt}, {cnt}, 1')
        a(f's_cmp_lg_u32 {cnt}, 0')
        a(f's_cbranch_scc1 {tag}_lloop')
    for i in range(NK-NS+1, NK):
        a(f's_waitcnt vmcnt({(NK-1-i)*L})')
        a('s_barrier')
    endpgm(a)

def slot_adv(a, s, size, total):
    return [f's_add_u32 {s}, {s}, {size}', f's_cmp_eq_u32 {s}, {total}', f's_cselect_b32 {s}, 0, {s}']

def mfma(d, A, B, C=None):
    c = vr(d, 4) if C is None else C
    return f'v_mfma_f32_16x16x32_bf16 {vr(d,4)}, {vr(A,4)}, {vr(B,4)}, {c}'

def k2_table():
    tab = [0xffffffff]*256
    txt = list(range(27))
    for x in range(8):
        ng = 6 if (x >> 1) == 3 else 7
        for j in range(4*ng):
            mb = 4*(x & 1) + (j & 3); nt = 7*(x >> 1) + (j >> 2)
            tab[j*8+x] = nt | (mb << 8)
    for x in range(8):
        ng = 6 if (x >> 1) == 3 else 7
        cap = 3 if x < 6 else 5
        for jj in range(cap):
            if txt: tab[(4*ng+jj)*8+x] = txt.pop(0) | (8 << 8)
    assert not txt
    return tab

def k2(a):
    name = 'k2_qkv_kernel'
    TABLES.append(('k2_tab', k2_table()))
    header(a, name)
    SLOT = 49152; NS = 3; NK = 18
    a('s_cmp_ge_u32 s2, 256')
    a('s_cbranch_scc1 K2_done')
    load_table(a, 'k2_tab', 12, 16)
    a(f'''
    s_load_dwordx4 s[4:7], s[0:1], 24
    s_load_dwordx2 s[8:9], s[0:1], 88
    v_lshrrev_b32 v1, 6, v0
    v_and_b32 v2, 63, v0
    v_readfirstlane_b32 s10, v1
    s_waitcnt lgkmcnt(0)
    s_cmp_eq_u32 s12, -1
    s_cbranch_scc1 K2_done
    s_and_b32 s13, s12, 0xff
    s_lshr_b32 s14, s12, 8
    s_cmp_eq_u32 s14, 8
    s_cselect_b32 s4, s6, s4
    s_cselect_b32 s5, s7, s5
    ''')
    srd(a, 20, 4, 5, 1152*6912)
    srd(a, 24, 8, 9, SZ_H, WS_H)
    srd(a, 28, 8, 9, SZ_QKV, WS_QKV)
    a('s_cmp_lt_u32 s10, 4')
    a('s_cbranch_scc1 K2_cons')
    a(f'''
    s_sub_u32 s11, s10, 4
    s_lshl_b32 s15, s14, 4
    s_lshl_b32 s16, s11, 2
    s_add_u32 s15, s15, s16
    s_mul_i32 s15, s15, 36864
    v_lshlrev_b32 v3, 4, v2
    v_add_u32 v4, s15, v3
    v_add_u32 v5, {36864-2048}, v4
    v_add_u32 v6, {2*36864}, v4
    v_add_u32 v7, {3*36864-2048}, v4
    ; W voffsets
    v_lshrrev_b32 v8, 4, v2
    s_lshl_b32 s16, s11, 4
    v_add_u32 v9, s16, v8
    v_mul_u32_u24 v9, 6912, v9
    s_lshl_b32 s17, s13, 8
    v_add_u32 v9, s17, v9
    v_and_b32 v10, 1, v2
    v_lshl_add_u32 v9, v10, 4, v9
    v_bfe_u32 v10, v2, 1, 3
    v_xor_b32 v10, v10, v8
    v_lshl_add_u32 v12, v10, 5, v9
    v_add_u32 v13, {4*6912-1024}, v12
    v_xor_b32 v10, 4, v10
    v_lshl_add_u32 v14, v10, 5, v9
    v_add_u32 v14, {8*6912-2048}, v14
    v_add_u32 v15, {4*6912-1024}, v14
    s_mov_b32 s40, 0
    s_mov_b32 s41, 0
    s_lshl_b32 s42, s11, 13
    s_lshl_b32 s43, s11, 12
    s_add_u32 s43, s43, 32768
    s_mov_b32 s44, 0
    ''')
    def issue():
        a('s_add_u32 m0, s44, s43')
        a('s_nop 0')
        for j in range(4): a(f'buffer_load_dwordx4 v{12+j}, s[20:23], s41 offen offset:{j*1024} lds')
        a('s_add_u32 m0, s44, s42')
        a(f's_add_u32 s41, s41, {64*6912}')
        a('buffer_load_dwordx4 v4, s[24:27], s40 offen lds')
        a('buffer_load_dwordx4 v4, s[24:27], s40 offen offset:1024 lds')
        a('buffer_load_dwordx4 v5, s[24:27], s40 offen offset:2048 lds')
        a('buffer_load_dwordx4 v5, s[24:27], s40 offen offset:3072 lds')
        a('s_add_u32 m0, m0, 4096')
        a(f's_add_u32 s44, s44, {SLOT}')
        a('buffer_load_dwordx4 v6, s[24:27], s40 offen lds')
        a('buffer_load_dwordx4 v6, s[24:27], s40 offen offset:1024 lds')
        a('buffer_load_dwordx4 v7, s[24:27], s40 offen offset:2048 lds')
        a('buffer_load_dwordx4 v7, s[24:27], s40 offen offset:3072 lds')
        a('s_add_u32 s40, s40, 2048')
        a(f's_cmp_eq_u32 s44, {NS*SLOT}')
        a('s_cselect_b32 s44, 0, s44')
    loader_loop(a, 'K2', NS, NK, 12, issue)
    a('K2_cons:')
    FW = [16, 64]; FH = [32, 80]; ACC = 128
    HB, WB, HC, WC = 112, 113, 117, 118
    a(f'''
    s_lshr_b32 s15, s10, 1
    s_and_b32 s16, s10, 1
    s_lshl_b32 s17, s16, 14
    v_lshlrev_b32 v3, 4, v2
    v_add_u32 v{HB}, s17, v3
    v_lshrrev_b32 v4, 4, v2
    v_bfe_u32 v5, v2, 2, 2
    v_lshl_add_u32 v6, v4, 3, v5
    v_lshlrev_b32 v6, 8, v6
    v_and_b32 v7, 3, v2
    v_lshl_add_u32 v6, v7, 3, v6
    v_add_u32 v6, 32768, v6
    v_and_b32 v4, 1, v4
    v_xor_b32 v4, s15, v4
    v_lshl_add_u32 v6, v4, 7, v6
    ''')
    for mi in range(4):
        a(f'v_xor_b32 v7, {mi}, v5')
        a(f'v_lshl_add_u32 v{WB+mi}, v7, 5, v6')
    a(f'v_mov_b32 v{HC}, v{HB}')
    for mi in range(4): a(f'v_mov_b32 v{WC+mi}, v{WB+mi}')
    for r in range(128): a(f'v_mov_b32 v{ACC+r}, 0')
    a('s_mov_b32 s44, 0')
    a(f's_mov_b32 s45, {NK}')
    def reads(f, s):
        r = []
        for mi in range(4):
            for t in range(2):
                r.append(f'ds_read_b64_tr_b16 {vr(FW[f]+4*mi+2*t,2)}, v{WC+mi} offset:{(32*s+4*t)*256}')
        h = [f'ds_read_b128 {vr(FH[f]+4*ni,4)}, v{HC} offset:{ni*2048+s*1024}' for ni in range(8)]
        o = r[0:2] + h[0:3] + r[2:4] + h[3:6] + r[4:6] + h[6:8] + r[6:8]
        return o
    def mfs(f):
        return [mfma(ACC + (mi*8+ni)*4, FW[f]+4*mi, FH[f]+4*ni) for mi in range(4) for ni in range(8)]
    a('s_barrier')
    for t in reads(0, 0): a(t)
    a('s_branch K2_mid')
    a('K2_loop:')
    a('s_barrier')
    for t in interleave(mfs(1), reads(0, 0), 0, 1.5): a(t)
    a('K2_mid:')
    a('s_waitcnt lgkmcnt(0)')
    adv = slot_adv(a, 's44', SLOT, NS*SLOT) + [f'v_add_u32 v{HC}, s44, v{HB}'] + [f'v_add_u32 v{WC+mi}, s44, v{WB+mi}' for mi in range(4)] + ['s_sub_u32 s45, s45, 1', 's_cmp_lg_u32 s45, 0']
    for t in interleave(mfs(0), reads(1, 1) + adv, 0, 1.2): a(t)
    a('s_waitcnt lgkmcnt(0)')
    a('s_cbranch_scc1 K2_loop')
    for t in mfs(1): a(t)
    a(f'''
    s_mul_i32 s17, s13, 7282
    s_lshr_b32 s17, s17, 16
    s_mul_i32 s18, s17, 9
    s_sub_u32 s18, s13, s18
    s_lshl_b32 s18, s18, 2
    s_lshl_b32 s19, s15, 1
    s_add_u32 s18, s18, s19
    s_lshl_b32 s18, s18, 10
    s_mul_i32 s17, s17, {SZ_H}
    s_add_u32 s18, s18, s17
    ; rb
    s_lshr_b32 s17, s14, 2
    s_mul_i32 s17, s17, 66
    s_and_b32 s19, s14, 3
    s_lshl_b32 s19, s19, 4
    s_add_u32 s17, s17, s19
    s_lshl_b32 s19, s16, 3
    s_add_u32 s17, s17, s19
    s_mov_b32 s46, 36864
    s_cmp_eq_u32 s14, 8
    s_cselect_b32 s17, 64, s17
    s_cselect_b32 s46, {65*36864}, s46
    s_cselect_b32 s47, s16, 0
    s_mul_i32 s17, s17, 36864
    s_add_u32 s18, s18, s17
    s_cmp_eq_u32 s47, 1
    s_cbranch_scc1 K2_done
    ''')
    for ni in range(8):
        for p in range(2):
            o = 16 + ((ni*2+p) % 8)*4
            for u in range(2):
                d = ACC + ((2*p+u)*8+ni)*4
                a(f'v_cvt_pk_bf16_f32 v{o+2*u}, v{d}, v{d+1}')
                a(f'v_cvt_pk_bf16_f32 v{o+2*u+1}, v{d+2}, v{d+3}')
            a(f'buffer_store_dwordx4 {vr(o,4)}, v3, s[28:31], s18 offen offset:{p*1024}')
        if ni == 3:
            a('s_cmp_eq_u32 s14, 8')
            a('s_cbranch_scc1 K2_done')
        if ni < 7: a(f's_add_u32 s18, s18, {"s46" if ni == 1 else 36864}')
    a('K2_done:')
    endpgm(a)
    return name, (256, 1, 1), (512, 1, 1), NS*SLOT, 256


def k3_table():
    tab = [0xffffffff]*256
    per = [[] for _ in range(8)]
    for b in range(2):
        A = [(0, b, kb, 2*qp) for qp in range(5) for kb in range(11)]
        Bt = [(1, b, 2*kp, 10) for kp in range(5)] + [(2, b, 10, 10)]
        al = A + Bt
        per[2*b] = al[:30]; per[2*b+1] = al[30:]
    V = [(3, 0, kt, nt) for nh in range(2) for kt in range(11) for nt in range(6*nh, 6*nh+6)]
    for h in range(2):
        hv = V[66*h:66*h+66]
        per[4+2*h] = hv[:32]; per[5+2*h] = hv[34:]
        per[2*h] += hv[32:34]
    for x in range(8):
        assert len(per[x]) <= 32, len(per[x])
        for j, (t, b, kb, qb) in enumerate(per[x]):
            tab[j*8+x] = t | (b << 4) | (kb << 8) | (qb << 16)
    return tab

def k3(a):
    name = 'k3_s_kernel'
    TABLES.append(('k3_tab', k3_table()))
    header(a, name)
    SLOT = 36864; NS = 4; NK = 18
    a('s_cmp_ge_u32 s2, 256')
    a('s_cbranch_scc1 K3_done')
    load_table(a, 'k3_tab', 12, 16)
    a(f"""
    s_load_dwordx2 s[4:5], s[0:1], 40
    s_load_dwordx2 s[8:9], s[0:1], 88
    v_lshrrev_b32 v1, 6, v0
    v_and_b32 v2, 63, v0
    v_readfirstlane_b32 s10, v1
    v_lshlrev_b32 v3, 4, v2
    s_waitcnt lgkmcnt(0)
    s_cmp_eq_u32 s12, -1
    s_cbranch_scc1 K3_done
    s_and_b32 s13, s12, 15
    s_bfe_u32 s14, s12, 0x40004
    s_bfe_u32 s15, s12, 0x80008
    s_lshr_b32 s16, s12, 16
    """)
    srd(a, 20, 4, 5, 1152*2304)
    srd(a, 24, 8, 9, SZ_QKV, WS_QKV)
    srd(a, 28, 8, 9, SZ_P, WS_P)
    srd(a, 32, 8, 9, SZ_VT, WS_VT)
    srd(a, 36, 8, 9, SZ_STAT, WS_STAT)
    a('s_cmp_lt_u32 s10, 4')
    a('s_cbranch_scc1 K3_cons')
    a('s_sub_u32 s11, s10, 4')
    a('s_mov_b32 s44, 0')
    a('s_cmp_eq_u32 s13, 3')
    a('s_cbranch_scc1 K3_vload')
    a(f"""
    s_mul_i32 s17, s14, 66
    s_mul_i32 s18, s15, 6
    s_add_u32 s18, s18, s17
    s_add_u32 s18, s18, 132
    s_mul_i32 s19, s16, 6
    s_add_u32 s19, s19, s17
    s_cmp_eq_u32 s13, 0
    s_cselect_b32 s40, 6, 12
    s_sub_u32 s19, s19, s40
    s_mul_i32 s41, s11, 9
    s_lshl_b32 s43, s41, 10
    """)
    for i in range(9):
        a(f"""
        s_add_u32 s42, s41, {i}
        s_lshr_b32 s45, s42, 1
        s_cmp_lt_u32 s45, s40
        s_cselect_b32 s46, s18, s19
        s_add_u32 s45, s45, s46
        s_mul_i32 s45, s45, 36
        s_and_b32 s42, s42, 1
        s_add_u32 s45, s45, s42
        s_lshl_b32 s{64+i}, s45, 10
        """)
    def issueS():
        a('s_add_u32 m0, s44, s43')
        a(f's_add_u32 s44, s44, {SLOT}')
        for i in range(9):
            a(f'buffer_load_dwordx4 v3, s[24:27], s{64+i} offen lds')
            if i < 8: a('s_add_u32 m0, m0, 1024')
            a(f's_add_u32 s{64+i}, s{64+i}, 2048')
        a(f's_cmp_eq_u32 s44, {NS*SLOT}')
        a('s_cselect_b32 s44, 0, s44')
    loader_loop(a, 'K3S', NS, NK, 9, issueS)
    a('K3_vload:')
    a(f"""
    s_mul_i32 s17, s15, 12
    s_mul_i32 s18, s11, 3
    s_add_u32 s17, s17, s18
    s_add_u32 s17, s17, 264
    s_mul_i32 s64, s17, 36864
    s_add_u32 s65, s64, 36864
    s_add_u32 s66, s65, 36864
    s_mul_i32 s43, s11, 6144
    s_mul_i32 s42, s11, 3072
    s_add_u32 s42, s42, 24576
    s_mul_i32 s67, s16, 192
    s_mul_i32 s18, s11, 192
    s_movk_i32 s19, 5462
    """)
    for i in range(3):
        a(f"""
        v_add_u32 v4, s18, v2
        v_add_u32 v4, {64*i}, v4
        v_mul_lo_u32 v5, v4, s19
        v_lshrrev_b32 v5, 16, v5
        v_mul_u32_u24 v6, 12, v5
        v_sub_u32 v6, v4, v6
        v_lshrrev_b32 v7, 1, v5
        v_and_b32 v7, 2, v7
        v_xor_b32 v6, v6, v7
        v_mul_u32_u24 v5, 2304, v5
        v_lshl_add_u32 v{8+i}, v6, 4, v5
        """)
    def issueV():
        a('s_add_u32 m0, s44, s42')
        a('s_nop 0')
        for i in range(3):
            a(f'buffer_load_dwordx4 v{8+i}, s[20:23], s67 offen lds')
            if i < 2: a('s_add_u32 m0, m0, 1024'); a('s_nop 0')
        a('s_add_u32 m0, s44, s43')
        a(f's_add_u32 s67, s67, {64*2304}')
        for i in range(3):
            a(f'buffer_load_dwordx4 v3, s[24:27], s{64+i} offen lds')
            a(f'buffer_load_dwordx4 v3, s[24:27], s{64+i} offen offset:1024 lds')
            if i < 2: a('s_add_u32 m0, m0, 2048')
            a(f's_add_u32 s{64+i}, s{64+i}, 2048')
        a(f's_add_u32 s44, s44, {SLOT}')
        a(f's_cmp_eq_u32 s44, {NS*SLOT}')
        a('s_cselect_b32 s44, 0, s44')
    loader_loop(a, 'K3V', NS, NK, 9, issueV)
    FA = [16, 52]; FB = [40, 76]; ACC = 96
    AB, BB, AC, BC = 88, 89, 92, 93
    a('K3_cons:')
    for r in range(72): a(f'v_mov_b32 v{ACC+r}, 0')
    a('s_mov_b32 s44, 0')
    a(f's_mov_b32 s45, {NK}')
    a('s_lshr_b32 s17, s10, 1')
    a('s_and_b32 s18, s10, 1')
    def mfs(f):
        return [mfma(ACC + (mi*3+ni)*4, FA[f]+4*mi, FB[f]+4*ni) for mi in range(6) for ni in range(3)]
    def areads(f, s):
        return [f'ds_read_b128 {vr(FA[f]+4*mi,4)}, v{AC} offset:{mi*2048+s*1024}' for mi in range(6)]
    def mainloop(tag, breads, nb):
        def reads(f, s):
            A = areads(f, s); B = breads(f, s)
            return A[:1] + B + A[1:]
        a(f'v_mov_b32 v{AC}, v{AB}')
        for j in range(nb): a(f'v_mov_b32 v{BC+j}, v{BB+j}')
        a('s_barrier')
        for t in reads(0, 0): a(t)
        a(f's_branch {tag}_mid')
        a(f'{tag}_loop:')
        a('s_barrier')
        for t in interleave(mfs(1), reads(0, 0), 0, 1.0): a(t)
        a(f'{tag}_mid:')
        a('s_waitcnt lgkmcnt(0)')
        adv = slot_adv(a, 's44', SLOT, NS*SLOT) + [f'v_add_u32 v{AC}, s44, v{AB}'] + [f'v_add_u32 v{BC+j}, s44, v{BB+j}' for j in range(nb)] + ['s_sub_u32 s45, s45, 1', 's_cmp_lg_u32 s45, 0']
        rd = reads(1, 1)
        for t in interleave(mfs(0), rd + adv, 0, 17.0/len(rd + adv)): a(t)
        a('s_waitcnt lgkmcnt(0)')
        a(f's_cbranch_scc1 {tag}_loop')
        for t in mfs(1): a(t)
    a('s_cmp_eq_u32 s13, 3')
    a('s_cbranch_scc1 K3_vcons')
    a(f"""
    s_mul_i32 s19, s10, 3
    s_add_u32 s40, s19, 6
    s_mul_i32 s41, s18, 3
    s_add_u32 s42, s41, 12
    s_mul_i32 s43, s17, 6
    s_cmp_eq_u32 s13, 0
    s_cselect_b32 s40, s40, s42
    s_cselect_b32 s43, 0, s43
    s_cselect_b32 s19, s19, s41
    s_cselect_b32 s41, 0, s17
    s_lshl_b32 s40, s40, 11
    s_lshl_b32 s43, s43, 11
    v_add_u32 v{AB}, s43, v3
    v_add_u32 v{BB}, s40, v3
    """)
    mainloop('K3S', lambda f, s: [f'ds_read_b128 {vr(FB[f]+4*ni,4)}, v{BC} offset:{ni*2048+s*1024}' for ni in range(3)], 1)
    a(f"""
    s_cmp_eq_u32 s13, 2
    s_cselect_b32 s42, s17, 0
    s_cmp_eq_u32 s42, 1
    s_cbranch_scc1 K3_done
    s_add_u32 s15, s15, s41
    s_mul_i32 s16, s16, 6
    s_add_u32 s16, s16, s19
    s_mul_i32 s40, s14, 66
    s_add_u32 s40, s40, s16
    s_mul_i32 s40, s40, 33
    s_mul_i32 s41, s15, 3
    s_add_u32 s40, s40, s41
    s_lshl_b32 s40, s40, 10
    s_mul_i32 s41, s14, 11
    s_add_u32 s41, s41, s15
    s_mul_i32 s41, s41, 66
    s_add_u32 s41, s41, s16
    s_lshl_b32 s41, s41, 7
    v_and_b32 v4, 15, v2
    v_lshlrev_b32 v4, 3, v4
    s_mov_b32 s46, {f32hex(65537.0)}
    s_mov_b32 s47, {f32hex(65537.0)}
    s_mov_b32 s48, {f32hex(-65536.0)}
    s_mov_b32 s49, {f32hex(-65536.0)}
    s_mov_b32 s50, {f32hex(1152**-0.5)}
    s_mov_b32 s51, {f32hex(1152**-0.5)}
    s_mov_b32 s52, {LOG2E:#x}
    s_mov_b32 s53, {LOG2E:#x}
    """)
    T = 16
    for ni in range(3):
        prs = [ACC + (mi*3+ni)*4 + 2*h for mi in range(6) for h in range(2)]
        if MIMIC_S:
            for j, p in enumerate(prs): a(f'v_pk_mul_f32 {vr(T+2*j,2)}, {vr(p,2)}, s[46:47]')
            for j, p in enumerate(prs): a(f'v_pk_fma_f32 {vr(p,2)}, {vr(p,2)}, s[48:49], {vr(T+2*j,2)}')
        for j, p in enumerate(prs): a(f'v_pk_mul_f32 {vr(p,2)}, {vr(p,2)}, s[50:51]')
        if MIMIC_S:
            for j, p in enumerate(prs): a(f'v_pk_mul_f32 {vr(T+2*j,2)}, {vr(p,2)}, s[46:47]')
            for j, p in enumerate(prs): a(f'v_pk_fma_f32 {vr(p,2)}, {vr(p,2)}, s[48:49], {vr(T+2*j,2)}')
        for j in range(4):
            p0, p1, p2 = prs[3*j], prs[3*j+1], prs[3*j+2]
            a(f'v_max3_f32 v{T+j}, v{p0}, v{p0+1}, v{p1}')
            a(f'v_max3_f32 v{T+4+j}, v{p1+1}, v{p2}, v{p2+1}')
        a(f'v_max3_f32 v{T}, v{T}, v{T+1}, v{T+2}')
        a(f'v_max3_f32 v{T+3}, v{T+3}, v{T+4}, v{T+5}')
        a(f'v_max3_f32 v{T}, v{T}, v{T+6}, v{T+7}')
        a(f'v_max_f32 v{T}, v{T}, v{T+3}')
        a(f'v_mov_b32 v{T+1}, v{T}')
        a(f'v_permlane32_swap_b32 v{T}, v{T+1}')
        a(f'v_max_f32 v{T}, v{T}, v{T+1}')
        a(f'v_mov_b32 v{T+1}, v{T}')
        a(f'v_permlane16_swap_b32 v{T}, v{T+1}')
        M = 8 + 2*ni
        a(f'v_max_f32 v{M}, v{T}, v{T+1}')
        a(f'v_mul_f32 v{T+2}, {0xbfb8aa3b:#x}, v{M}')
        a(f'v_mov_b32 v{T+3}, v{T+2}')
        for p in prs: a(f'v_pk_fma_f32 {vr(p,2)}, {vr(p,2)}, s[52:53], {vr(T+2,2)}')
        for p in prs:
            a(f'v_exp_f32 v{p}, v{p}')
            a(f'v_exp_f32 v{p+1}, v{p+1}')
        for j in range(6): a(f'v_pk_add_f32 {vr(T+4+2*j,2)}, {vr(prs[j],2)}, {vr(prs[6+j],2)}')
        O = 40 + ni*12
        for pp in range(3):
            for u in range(2):
                d = ACC + ((2*pp+u)*3+ni)*4
                a(f'v_cvt_pk_bf16_f32 v{O+4*pp+2*u}, v{d}, v{d+1}')
                a(f'v_cvt_pk_bf16_f32 v{O+4*pp+2*u+1}, v{d+2}, v{d+3}')
            a(f'buffer_store_dwordx4 {vr(O+4*pp,4)}, v3, s[28:31], s40 offen offset:{pp*1024}')
        for j in range(3): a(f'v_pk_add_f32 {vr(T+4+2*j,2)}, {vr(T+4+2*j,2)}, {vr(T+10+2*j,2)}')
        a(f'v_pk_add_f32 {vr(T+4,2)}, {vr(T+4,2)}, {vr(T+6,2)}')
        a(f'v_pk_add_f32 {vr(T+4,2)}, {vr(T+4,2)}, {vr(T+8,2)}')
        a(f'v_add_f32 v{T}, v{T+4}, v{T+5}')
        a(f'v_mov_b32 v{T+1}, v{T}')
        a(f'v_permlane32_swap_b32 v{T}, v{T+1}')
        a(f'v_add_f32 v{T}, v{T}, v{T+1}')
        a(f'v_mov_b32 v{T+1}, v{T}')
        a(f'v_permlane16_swap_b32 v{T}, v{T+1}')
        a(f'v_add_f32 v{M+1}, v{T}, v{T+1}')
        a(f'buffer_store_dwordx2 {vr(M,2)}, v4, s[36:39], s41 offen offset:{ni*128}')
        if ni < 2: a(f's_add_u32 s40, s40, {33*1024}')
    endpgm(a)
    a('K3_vcons:')
    a(f"""
    s_mul_i32 s43, s17, {6*2048}
    v_add_u32 v{AB}, s43, v3
    v_lshrrev_b32 v4, 2, v2
    v_mul_u32_u24 v4, 192, v4
    v_and_b32 v5, 3, v2
    v_lshl_add_u32 v4, v5, 3, v4
    v_add_u32 v4, 24576, v4
    v_bfe_u32 v5, v2, 4, 1
    s_mul_i32 s19, s18, 3
    """)
    for j in range(3):
        a(f's_add_u32 s40, s19, {j}')
        a(f'v_xor_b32 v6, s40, v5')
        a(f'v_lshl_add_u32 v{BB+j}, v6, 5, v4')
    mainloop('K3V', lambda f, s: [f'ds_read_b64_tr_b16 {vr(FB[f]+4*ni+2*t,2)}, v{BC+ni} offset:{(32*s+16*t)*192}' for ni in range(3) for t in range(2)], 3)
    a(f"""
    s_lshl_b32 s15, s15, 1
    s_add_u32 s15, s15, s17
    s_cmp_ge_u32 s15, 11
    s_cselect_b32 s14, 1, 0
    s_mul_i32 s40, s14, 11
    s_sub_u32 s15, s15, s40
    s_mul_i32 s40, s14, 72
    s_mul_i32 s41, s16, 6
    s_add_u32 s40, s40, s41
    s_mul_i32 s40, s40, 33
    s_mul_i32 s41, s15, 3
    s_add_u32 s40, s40, s41
    s_lshl_b32 s40, s40, 10
    v_bfe_u32 v4, v2, 2, 1
    v_mul_u32_u24 v4, 33792, v4
    v_lshrrev_b32 v5, 4, v2
    v_lshl_add_u32 v4, v5, 8, v4
    v_bfe_u32 v5, v2, 3, 1
    v_lshl_add_u32 v4, v5, 6, v4
    v_and_b32 v5, 3, v2
    v_lshl_add_u32 v4, v5, 4, v4
    """)
    for ni in range(3):
        a(f"""
        s_add_u32 s41, s19, {ni}
        s_lshr_b32 s42, s41, 1
        s_mul_i32 s42, s42, {2*33792}
        s_and_b32 s41, s41, 1
        s_lshl_b32 s41, s41, 7
        s_add_u32 s41, s41, s42
        s_add_u32 s41, s41, s40
        """)
        O = 16 + ni*12
        for pp in range(3):
            for u in range(2):
                d = ACC + ((2*pp+u)*3+ni)*4
                a(f'v_cvt_pk_bf16_f32 v{O+4*pp+2*u}, v{d}, v{d+1}')
                a(f'v_cvt_pk_bf16_f32 v{O+4*pp+2*u+1}, v{d+2}, v{d+3}')
            a(f'buffer_store_dwordx4 {vr(O+4*pp,4)}, v4, s[32:35], s41 offen offset:{pp*1024}')
    a('K3_done:')
    endpgm(a)
    return name, (256, 1, 1), (512, 1, 1), NS*SLOT, 168

MIMIC_S = int(os.environ.get('MIMIC_S', '1'))

def k4_table():
    tab = [0xffffffff]*256
    for x in range(8):
        b = x >> 2; qh = x & 1; nh = (x >> 1) & 1
        L = [(0, b, 4*qh + qi, 6*nh + ni) for ni in range(6) for qi in range(4)]
        dts = list(range(18))[(x & 3)::4]
        L += [(1, b, 8, dt) for dt in dts]
        for j, (t, b_, qt, nt) in enumerate(L):
            tab[j*8+x] = t | (b_ << 4) | (qt << 8) | (nt << 16)
    return tab

def factor_calc(a, LF, R):
    a(f"""
    s_mul_i32 s40, s14, {11*8448}
    s_lshl_b32 s41, s15, 10
    s_add_u32 s40, s40, s41
    v_lshlrev_b32 v5, 3, v0
    """)
    for c in range(11):
        a(f'buffer_load_dwordx2 {vr(R+2*c,2)}, v5, s[36:39], s40 offen')
        if c < 10: a('s_add_u32 s40, s40, 8448')
    a('s_waitcnt vmcnt(0)')
    M = R + 22; Ls = R + 23
    a(f'v_max3_f32 v{M}, v{R}, v{R+2}, v{R+4}')
    for c in range(3, 11, 2): a(f'v_max3_f32 v{M}, v{M}, v{R+2*c}, v{R+2*c+2}')
    for c in range(11): a(f'v_sub_f32 v{R+2*c}, v{R+2*c}, v{M}')
    for c in range(11): a(f'v_mul_f32 v{R+2*c}, {LOG2E:#x}, v{R+2*c}')
    for c in range(11): a(f'v_exp_f32 v{R+2*c}, v{R+2*c}')
    a(f'v_mul_f32 v{Ls}, v{R}, v{R+1}')
    for c in range(1, 11): a(f'v_fmac_f32 v{Ls}, v{R+2*c}, v{R+2*c+1}')
    a(f'v_rcp_f32 v{Ls}, v{Ls}')
    a('v_lshlrev_b32 v5, 2, v0')
    a(f'v_add_u32 v5, {LF}, v5')
    for c in range(11): a(f'v_mul_f32 v{R+2*c}, v{R+2*c}, v{Ls}')
    for c in range(11): a(f'ds_write_b32 v5, v{R+2*c} offset:{c*512}')
    a('s_waitcnt lgkmcnt(0)')

def k4(a):
    name = 'k4_pv_kernel'
    TABLES.append(('k4_tab', k4_table()))
    header(a, name)
    SLOT = 45056; NS = 3; NK = 11; LF = NS*SLOT
    VTO = WS_VT - WS_P
    a('s_cmp_ge_u32 s2, 256')
    a('s_cbranch_scc1 K4_done')
    load_table(a, 'k4_tab', 12, 16)
    a(f"""
    s_load_dwordx2 s[4:5], s[0:1], 0
    s_load_dwordx2 s[6:7], s[0:1], 72
    s_load_dwordx2 s[8:9], s[0:1], 88
    v_lshrrev_b32 v1, 6, v0
    v_and_b32 v2, 63, v0
    v_readfirstlane_b32 s10, v1
    v_lshlrev_b32 v3, 4, v2
    s_waitcnt lgkmcnt(0)
    s_cmp_eq_u32 s12, -1
    s_cbranch_scc1 K4_done
    s_and_b32 s13, s12, 15
    s_bfe_u32 s14, s12, 0x40004
    s_bfe_u32 s15, s12, 0x80008
    s_lshr_b32 s16, s12, 16
    """)
    srd(a, 20, 4, 5, 2048*2304)
    srd(a, 24, 8, 9, VTO + SZ_VT, WS_P)
    srd(a, 28, 6, 7, 2048*2304)
    srd(a, 32, 8, 9, SZ_GATE, WS_GATE)
    srd(a, 36, 8, 9, SZ_STAT, WS_STAT)
    srd(a, 48, 8, 9, SZ_QKV, WS_QKV)
    srd(a, 52, 8, 9, SZ_AT, WS_AT)
    a('s_cmp_eq_u32 s13, 1')
    a('s_cbranch_scc1 K4_txt')
    a('s_cmp_lt_u32 s10, 4')
    a('s_cbranch_scc1 K4_cons')
    a(f"""
    s_sub_u32 s11, s10, 4
    s_mov_b32 s44, 0
    s_mul_i32 s17, s14, 72
    s_mul_i32 s18, s16, 6
    s_add_u32 s17, s17, s18
    s_mul_i32 s17, s17, 33792
    s_add_u32 s17, s17, {VTO}
    s_mul_i32 s18, s14, 66
    s_lshl_b32 s19, s15, 3
    s_add_u32 s18, s18, s19
    s_sub_u32 s18, s18, 6
    s_mul_i32 s18, s18, 33792
    s_lshl_b32 s43, s11, 10
    s_cmp_ge_u32 s11, 2
    s_cselect_b32 s19, 0x7ffffff0, 0
    v_or_b32 v4, s19, v3
    """)
    for i in range(11):
        a(f"""
        s_add_u32 s40, s11, {4*i}
        s_mul_i32 s41, s40, 43
        s_lshr_b32 s41, s41, 7
        s_mul_i32 s42, s41, 3
        s_sub_u32 s42, s40, s42
        s_cmp_lt_u32 s41, 6
        s_cselect_b32 s45, s17, s18
        s_mul_i32 s41, s41, 33792
        s_lshl_b32 s42, s42, 10
        s_add_u32 s45, s45, s41
        s_add_u32 s{64+i}, s45, s42
        """)
    a('s_cmp_ge_u32 s11, 2')
    a('s_cselect_b32 s74, 0, s74')
    def issue():
        a('s_add_u32 m0, s44, s43')
        a(f's_add_u32 s44, s44, {SLOT}')
        for i in range(11):
            a(f'buffer_load_dwordx4 v{4 if i == 10 else 3}, s[24:27], s{64+i} offen lds')
            if i < 10: a('s_add_u32 m0, m0, 4096')
            a(f's_add_u32 s{64+i}, s{64+i}, 3072')
        a(f's_cmp_eq_u32 s44, {NS*SLOT}')
        a('s_cselect_b32 s44, 0, s44')
    loader_loop(a, 'K4', NS, NK, 11, issue)
    a('K4_cons:')
    F = [16, 48, 80]; TMP = 112; ACC = 160; X = 208; G = 232
    AB, BB, AC, BC, FA = 6, 7, 8, 9, 10
    a(f"""
    v_and_b32 v4, 15, v2
    v_lshrrev_b32 v5, 4, v2
    v_mul_u32_u24 v12, 2304, v4
    v_lshl_add_u32 v12, v5, 4, v12
    v_add_u32 v13, 36864, v12
    s_lshl_b32 s17, s14, 10
    s_lshl_b32 s18, s15, 7
    s_add_u32 s17, s17, s18
    s_lshl_b32 s18, s10, 5
    s_add_u32 s17, s17, s18
    s_mul_i32 s17, s17, 2304
    s_mul_i32 s18, s16, 192
    s_add_u32 s17, s17, s18
    s_mul_i32 s19, s14, 2304
    s_add_u32 s19, s19, s18
    v_lshlrev_b32 v11, 4, v5
    """)
    for ni in range(2):
        for p in range(3):
            a(f'buffer_load_dwordx4 {vr(X+(ni*3+p)*4,4)}, v{12+ni}, s[20:23], s17 offen offset:{p*64}')
    for p in range(3):
        a(f'buffer_load_dwordx4 {vr(G+p*4,4)}, v11, s[32:35], s19 offen offset:{p*64}')
    a('s_cmp_ge_u32 s10, 2')
    a('s_cbranch_scc1 K4_nofac')
    factor_calc(a, LF, 16)
    a('K4_nofac:')
    for r in range(96): a(f'v_mov_b32 v{TMP+r}, 0')
    a(f"""
    v_mov_b32 v14, 0
    v_mov_b32 v15, 0
    v_mov_b32 v{AB}, v3
    s_mul_i32 s18, s10, 6144
    s_add_u32 s18, s18, 18432
    v_add_u32 v{BB}, s18, v3
    v_mov_b32 v{AC}, v{AB}
    v_mov_b32 v{BC}, v{BB}
    s_lshl_b32 s18, s10, 7
    s_add_u32 s18, s18, {LF}
    v_lshl_add_u32 v{FA}, v4, 2, s18
    s_mov_b32 s44, 0
    s_mov_b32 s45, {NK}
    """)
    def reads(f, s):
        A = [f'ds_read_b128 {vr(F[f]+4*mi,4)}, v{AC} offset:{mi*3072+s*1024}' for mi in range(6)]
        B = [f'ds_read_b128 {vr(F[f]+24+4*ni,4)}, v{BC} offset:{ni*3072+s*1024}' for ni in range(2)]
        return A[:1] + B + A[1:]
    def mfs(f, zero=False):
        return [mfma(TMP + (mi*2+ni)*4, F[f]+4*mi, F[f]+24+4*ni, '0' if zero else None) for mi in range(6) for ni in range(2)]
    def fma(j):
        ni = j & 1
        sel = 'op_sel:[0,1,0] op_sel_hi:[1,1,1]' if ni else 'op_sel_hi:[1,0,1]'
        return [f'v_pk_fma_f32 {vr(ACC+4*j+2*h,2)}, {vr(TMP+4*j+2*h,2)}, v[14:15], {vr(ACC+4*j+2*h,2)} {sel}' for h in range(2)]
    a('s_barrier')
    for t in reads(0, 0): a(t)
    a('s_branch K4_mid')
    a('K4_loop:')
    a('s_barrier')
    m = mfs(2); rd = reads(0, 0)
    for i in range(12):
        a(m[i])
        if i < 6:
            a(rd[i])
            if i >= 4: a(rd[i+2])
        else:
            for t in fma(i-6): a(t)
    a('K4_mid:')
    a('s_waitcnt lgkmcnt(0)')
    m = mfs(0, True); rd = reads(1, 1)
    for i in range(12):
        a(m[i])
        if i < 6:
            for t in fma(i+6): a(t)
        if i < 8: a(rd[i])
    a('s_waitcnt lgkmcnt(0)')
    adv = [f'ds_read2_b32 v[14:15], v{FA} offset0:0 offset1:16'] + slot_adv(a, 's44', SLOT, NS*SLOT) + [f'v_add_u32 v{AC}, s44, v{AB}', f'v_add_u32 v{BC}, s44, v{BB}', f'v_add_u32 v{FA}, 512, v{FA}', 's_sub_u32 s45, s45, 1', 's_cmp_lg_u32 s45, 0']
    for t in interleave(mfs(1), reads(2, 2) + adv, 0, 0.68): a(t)
    a('s_waitcnt lgkmcnt(0)')
    a('s_cbranch_scc1 K4_loop')
    for t in mfs(2): a(t)
    a('s_mov_b32 s40, 0xffff0000')
    a('s_waitcnt vmcnt(0)')
    GF = 16
    for r in range(12):
        a(f'v_lshlrev_b32 v{GF+2*r}, 16, v{G+r}')
        a(f'v_and_b32 v{GF+2*r+1}, s40, v{G+r}')
    for j in range(12):
        for t in fma(j): a(t)
    XF = 48
    for ni in range(2):
        for p in range(3):
            xr = X + (ni*3+p)*4; xf = XF + ((ni*3+p) % 2)*8
            for r in range(4):
                a(f'v_lshlrev_b32 v{xf+2*r}, 16, v{xr+r}')
                a(f'v_and_b32 v{xf+2*r+1}, s40, v{xr+r}')
            for u in range(2):
                d = ACC + ((2*p+u)*2+ni)*4
                for h in range(2):
                    a(f'v_pk_fma_f32 {vr(xf+4*u+2*h,2)}, {vr(d+2*h,2)}, {vr(GF+8*p+4*u+2*h,2)}, {vr(xf+4*u+2*h,2)}')
            for r in range(4): a(f'v_cvt_pk_bf16_f32 v{xr+r}, v{xf+2*r}, v{xf+2*r+1}')
            a(f'buffer_store_dwordx4 {vr(xr,4)}, v{12+ni}, s[28:31], s17 offen offset:{p*64}')
    endpgm(a)
    a('K4_txt:')
    PF = 48
    AF = 88
    TM = 104
    AC2 = 136
    a(f"""
    s_mul_i32 s17, s14, 66
    s_add_u32 s18, s17, 264
    s_lshl_b32 s19, s10, 1
    s_add_u32 s18, s18, s19
    s_mul_i32 s18, s18, 36
    s_lshl_b32 s19, s16, 1
    s_add_u32 s18, s18, s19
    s_lshl_b32 s18, s18, 10
    s_add_u32 s17, s17, 64
    s_mul_i32 s17, s17, 33
    s_add_u32 s17, s17, s10
    s_lshl_b32 s17, s17, 10
    v_add_u32 v4, {36864-2048}, v3
    v_add_u32 v6, 33792, v3
    s_lshl_b32 s19, s10, 12
    """)
    for j in range(5):
        if j == 4:
            a('s_cmp_lg_u32 s10, 0'); a('s_cbranch_scc1 K4_t1')
        a(f's_add_u32 m0, s19, {j*32768}')
        a(f'buffer_load_dwordx4 {vr(PF+8*j,4)}, v3, s[24:27], s17 offen')
        a(f'buffer_load_dwordx4 {vr(PF+8*j+4,4)}, v6, s[24:27], s17 offen')
        a('buffer_load_dwordx4 v3, s[48:51], s18 offen lds')
        a('buffer_load_dwordx4 v3, s[48:51], s18 offen offset:1024 lds')
        a('buffer_load_dwordx4 v4, s[48:51], s18 offen offset:2048 lds')
        a('buffer_load_dwordx4 v4, s[48:51], s18 offen offset:3072 lds')
        a(f's_add_u32 s18, s18, {16*36864}')
        a(f's_add_u32 s17, s17, 8192')
    a('K4_t1:')
    a('s_cmp_ge_u32 s10, 2')
    a('s_cbranch_scc1 K4_t2')
    factor_calc(a, LF, 16)
    a('K4_t2:')
    for r in range(32): a(f'v_mov_b32 v{AC2+r}, 0')
    a(f"""
    v_and_b32 v7, 3, v2
    v_lshlrev_b32 v7, 8, v7
    v_lshrrev_b32 v8, 2, v2
    v_lshl_add_u32 v7, v8, 4, v7
    v_add_u32 v7, s19, v7
    v_and_b32 v8, 15, v2
    v_lshlrev_b32 v8, 2, v8
    s_waitcnt vmcnt(0)
    s_barrier
    """)
    for j in range(5):
        if j == 4:
            a('s_cmp_lg_u32 s10, 0'); a('s_cbranch_scc1 K4_t3')
        a(f"""
        s_add_u32 s40, s10, {8*j}
        s_mul_i32 s40, s40, 43
        s_lshr_b32 s40, s40, 7
        s_lshl_b32 s40, s40, 9
        s_add_u32 s40, s40, {LF}
        v_add_u32 v9, s40, v8
        ds_read2_b32 v[14:15], v9 offset0:0 offset1:16
        """)
        for mt in range(4):
            for t in range(2):
                a(f'ds_read_b64_tr_b16 {vr(AF+4*mt+2*t,2)}, v7 offset:{t*2048+(mt>>1)*1024+(mt&1)*8}')
        a('v_add_u32 v7, 32768, v7')
        a('s_waitcnt lgkmcnt(0)')
        for mt in range(4):
            for ni in range(2): a(mfma(TM+(mt*2+ni)*4, AF+4*mt, PF+8*j+4*ni, '0'))
        for q in range(8):
            sel = 'op_sel:[0,1,0] op_sel_hi:[1,1,1]' if q & 1 else 'op_sel_hi:[1,0,1]'
            for h in range(2):
                a(f'v_pk_fma_f32 {vr(AC2+4*q+2*h,2)}, {vr(TM+4*q+2*h,2)}, v[14:15], {vr(AC2+4*q+2*h,2)} {sel}')
    a('K4_t3:')
    a('s_barrier')
    a('s_lshl_b32 s19, s10, 13')
    a('v_add_u32 v7, s19, v3')
    for q in range(8): a(f'ds_write_b128 v7, {vr(AC2+4*q,4)} offset:{q*1024}')
    a(f"""
    s_waitcnt lgkmcnt(0)
    s_barrier
    s_cmp_ge_u32 s10, 4
    s_cbranch_scc1 K4_done
    s_and_b32 s17, s10, 1
    s_lshr_b32 s18, s10, 1
    s_lshl_b32 s19, s18, 2
    s_add_u32 s19, s19, s17
    s_lshl_b32 s19, s19, 10
    v_add_u32 v7, s19, v3
    """)
    for w in range(8):
        for hf in range(2): a(f'ds_read_b128 {vr(16+w*8+hf*4,4)}, v7 offset:{w*8192+hf*2048}')
    a(f"""
    s_lshl_b32 s19, s14, 1
    s_add_u32 s19, s19, s17
    s_mul_i32 s19, s19, 36
    s_lshl_b32 s40, s16, 1
    s_add_u32 s19, s19, s40
    s_add_u32 s19, s19, s18
    s_lshl_b32 s19, s19, 10
    s_waitcnt lgkmcnt(0)
    """)
    for w in range(1, 8):
        for h in range(4): a(f'v_pk_add_f32 {vr(16+2*h,2)}, {vr(16+2*h,2)}, {vr(16+8*w+2*h,2)}')
    for h in range(4): a(f'v_cvt_pk_bf16_f32 v{8+h}, v{16+2*h}, v{17+2*h}')
    a('buffer_store_dwordx4 v[8:11], v3, s[52:55], s19 offen')
    a('K4_done:')
    endpgm(a)
    return name, (256, 1, 1), (512, 1, 1), LF + 11*512, 248

def k5(a):
    name = 'k5_ot_kernel'
    header(a, name)
    LR = 9*8192
    a(f"""
    s_cmp_ge_u32 s2, 72
    s_cbranch_scc1 K5_done
    s_load_dwordx2 s[4:5], s[0:1], 8
    s_load_dwordx2 s[6:7], s[0:1], 72
    s_load_dwordx2 s[8:9], s[0:1], 88
    s_load_dwordx2 s[12:13], s[0:1], 48
    v_lshrrev_b32 v1, 6, v0
    v_and_b32 v2, 63, v0
    v_readfirstlane_b32 s10, v1
    v_lshlrev_b32 v3, 4, v2
    s_and_b32 s14, s2, 1
    s_lshr_b32 s16, s2, 1
    v_lshrrev_b32 v4, 2, v2
    v_mul_u32_u24 v4, 2304, v4
    v_and_b32 v5, 3, v2
    v_lshl_add_u32 v4, v5, 4, v4
    s_mul_i32 s17, s10, {128*2304}
    s_lshl_b32 s18, s16, 6
    s_add_u32 s17, s17, s18
    s_lshl_b32 s19, s10, 13
    s_mul_i32 s40, s14, 72
    s_lshl_b32 s41, s10, 2
    s_add_u32 s40, s40, s41
    s_lshl_b32 s40, s40, 10
    v_add_u32 v6, 36864, v3
    s_waitcnt lgkmcnt(0)
    """)
    srd(a, 20, 4, 5, 64*2304)
    srd(a, 24, 12, 13, 1152*2304)
    srd(a, 28, 6, 7, 64*2304, 2048*2304)
    srd(a, 32, 8, 9, SZ_GATE, WS_GATE)
    srd(a, 52, 8, 9, SZ_AT, WS_AT)
    a('s_mov_b32 m0, s19')
    for i in range(8):
        a('s_nop 0')
        a('buffer_load_dwordx4 v4, s[24:27], s17 offen lds')
        if i < 7:
            a('s_add_u32 m0, m0, 1024')
            a(f's_add_u32 s17, s17, {16*2304}')
    BF = 16
    for s in range(4):
        a(f'buffer_load_dwordx4 {vr(BF+8*s,4)}, v3, s[52:55], s40 offen offset:{s*1024}')
        a(f'buffer_load_dwordx4 {vr(BF+8*s+4,4)}, v6, s[52:55], s40 offen offset:{s*1024}')
    a(f"""
    v_and_b32 v8, 15, v2
    v_mul_u32_u24 v8, 2304, v8
    v_lshrrev_b32 v9, 4, v2
    v_lshlrev_b32 v9, 4, v9
    v_add_u32 v8, v8, v9
    s_lshl_b32 s41, s14, 1
    s_and_b32 s42, s10, 1
    s_add_u32 s41, s41, s42
    s_mul_i32 s41, s41, 36864
    s_add_u32 s41, s41, s18
    s_mul_i32 s42, s14, 2304
    s_add_u32 s42, s42, s18
    s_add_u32 s42, s42, 4608
    buffer_load_dwordx4 v[96:99], v8, s[20:23], s41 offen
    buffer_load_dwordx4 v[100:103], v9, s[32:35], s42 offen
    v_add_u32 v7, s19, v3
    s_waitcnt vmcnt(2)
    """)
    AF = 48
    for s in range(4):
        for u in range(2):
            for t in range(2):
                a(f'ds_read_b64_tr_b16 {vr(AF+8*s+4*u+2*t,2)}, v7 offset:{(32*s+16*t)*64+u*8}')
    ACC = 80
    a('s_waitcnt lgkmcnt(0)')
    for s in range(4):
        for u in range(2):
            for ni in range(2):
                a(mfma(ACC+(ni*2+u)*4, AF+8*s+4*u, BF+8*s+4*ni, '0' if s == 0 else None))
    a('s_lshl_b32 s19, s10, 12')
    a(f's_add_u32 s19, s19, {LR}')
    a('v_add_u32 v7, s19, v3')
    for q in range(4): a(f'ds_write_b128 v7, {vr(ACC+4*q,4)} offset:{q*1024}')
    a(f"""
    s_waitcnt lgkmcnt(0)
    s_barrier
    s_cmp_ge_u32 s10, 2
    s_cbranch_scc1 K5_done
    s_lshl_b32 s19, s10, 11
    s_add_u32 s19, s19, {LR}
    v_add_u32 v7, s19, v3
    """)
    for w in range(9):
        for u in range(2): a(f'ds_read_b128 {vr(16+w*8+u*4,4)}, v7 offset:{w*4096+u*1024}')
    a('s_mov_b32 s40, 0xffff0000')
    a('s_waitcnt vmcnt(0)')
    for r in range(4):
        a(f'v_lshlrev_b32 v{104+2*r}, 16, v{96+r}')
        a(f'v_and_b32 v{105+2*r}, s40, v{96+r}')
        a(f'v_lshlrev_b32 v{112+2*r}, 16, v{100+r}')
        a(f'v_and_b32 v{113+2*r}, s40, v{100+r}')
    a('s_waitcnt lgkmcnt(0)')
    for w in range(1, 9):
        for h in range(4): a(f'v_pk_add_f32 {vr(16+2*h,2)}, {vr(16+2*h,2)}, {vr(16+8*w+2*h,2)}')
    for h in range(4): a(f'v_pk_fma_f32 {vr(104+2*h,2)}, {vr(16+2*h,2)}, {vr(112+2*h,2)}, {vr(104+2*h,2)}')
    for h in range(4): a(f'v_cvt_pk_bf16_f32 v{96+h}, v{104+2*h}, v{105+2*h}')
    a('buffer_store_dwordx4 v[96:99], v8, s[28:31], s41 offen')
    a('K5_done:')
    endpgm(a)
    return name, (72, 1, 1), (576, 1, 1), LR + 9*4096, 120

KERNELS = [k0, k1, k2, k3, k4, k5]
```

```python
import sys
from asmlib import Asm, kdesc

D = 1152; NI = 1024; NT = 32; NTOK = 1056
WS_MODP = 0x0;      SZ_MODP = 2*2*2*3456*4
WS_GATE = 0x20000;  SZ_GATE = 2*2*1152*2
WS_STAT = 0x30000;  SZ_STAT = 2*11*1056*8
WS_AT   = 0x60000;  SZ_AT = 4*36*1024
WS_H    = 0x100000; SZ_H = 132*36*1024
WS_QKV  = 0x600000; SZ_QKV = 3*SZ_H
WS_P    = 0x1400000; SZ_P = 2*66*33*1024
WS_VT   = 0x1900000; SZ_VT = 2*72*33*1024
LOG2E = 0x3fb8aa3b

def f32hex(x):
    import struct
    return '0x%08x' % struct.unpack('<I', struct.pack('<f', x))[0]

import os
STAMP = int(os.environ.get('STAMP', '0'))
WS_STAMP = 0x2000000
_kid = [-1]
def header(a, name):
    a.raw(f'.globl {name}\n.p2align 8\n.type {name},@function')
    a(f'{name}:')
    _kid[0] += 1
    if STAMP:
        a(f"""
        s_memrealtime s[88:89]
        s_memtime s[90:91]
        s_load_dwordx2 s[96:97], s[0:1], 88
        v_readfirstlane_b32 s94, v0
        s_lshr_b32 s94, s94, 6
        s_lshl_b32 s95, s2, 4
        s_add_u32 s94, s94, s95
        s_lshl_b32 s94, s94, 5
        s_add_u32 s94, s94, {WS_STAMP + _kid[0]*0x80000}
        s_mov_b32 s86, 0
        s_mov_b32 s87, 0
        s_mov_b32 s84, 0
        s_mov_b32 s85, 0
        s_waitcnt lgkmcnt(0)
        """)

def stamp(a, slot):
    if STAMP:
        a(f's_memrealtime s[{86-2*slot}:{87-2*slot}]')

def endpgm(a):
    if STAMP:
        a("""
        s_waitcnt vmcnt(0) lgkmcnt(0)
        s_memrealtime s[92:93]
        s_memtime s[98:99]
        s_mov_b64 exec, 1
        s_waitcnt lgkmcnt(0)
        v_mov_b32 v0, s88
        v_mov_b32 v1, s92
        v_mov_b32 v2, s90
        v_mov_b32 v3, s98
        v_mov_b32 v4, s94
        v_mov_b32 v6, s86
        v_mov_b32 v7, s84
        s_getreg_b32 s86, hwreg(HW_REG_XCC_ID)
        s_getreg_b32 s87, hwreg(HW_REG_HW_ID)
        v_mov_b32 v8, s86
        v_mov_b32 v9, s87
        global_store_dwordx4 v4, v[0:3], s[96:97]
        global_store_dwordx4 v4, v[6:9], s[96:97] offset:16
        """)
    a('s_endpgm')

def srd(a, d, lo, hi, size, off=0):
    if off:
        a(f's_add_u32 s{d}, s{lo}, {off:#x}')
        a(f's_addc_u32 s{d+1}, s{hi}, 0')
    else:
        a(f's_mov_b32 s{d}, s{lo}')
        a(f's_mov_b32 s{d+1}, s{hi}')
    a(f's_mov_b32 s{d+2}, {size:#x}')
    a(f's_mov_b32 s{d+3}, 0x20000')

def vr(b, n): return f'v[{b}:{b+n-1}]'

def k0(a):
    name = 'k0_mod_kernel'
    header(a, name)
    a(f'''
    s_cmp_ge_u32 s2, 216
    s_cbranch_scc1 K0_done
    s_load_dwordx2 s[4:5], s[0:1], 16
    s_load_dwordx4 s[8:11], s[0:1], 56
    s_load_dwordx2 s[6:7], s[0:1], 88
    s_and_b32 s12, s2, 1
    s_lshr_b32 s13, s2, 1
    s_cmp_ge_u32 s13, 54
    s_cselect_b32 s14, 1, 0
    s_mul_i32 s15, s14, 54
    s_sub_u32 s13, s13, s15
    v_lshrrev_b32 v1, 3, v0
    v_lshlrev_b32 v1, 3, v1
    s_mul_i32 s16, s12, 576
    v_add_u32 v1, s16, v1
    s_movk_i32 s17, 13824
    v_mul_lo_u32 v2, v1, s17
    v_and_b32 v3, 7, v0
    v_lshlrev_b32 v3, 4, v3
    s_lshl_b32 s18, s13, 7
    v_add3_u32 v2, v2, v3, s18
    v_lshlrev_b32 v4, 1, v1
    s_waitcnt lgkmcnt(0)
    s_cmp_eq_u32 s14, 1
    s_cselect_b32 s8, s10, s8
    s_cselect_b32 s9, s11, s9
    ''')
    srd(a, 20, 8, 9, 1152*13824)
    srd(a, 24, 4, 5, 2*1152*2)
    srd(a, 28, 6, 7, SZ_MODP, WS_MODP)
    a('buffer_load_dwordx4 v[8:11], v4, s[24:27], 0 offen')
    a('buffer_load_dwordx4 v[12:15], v4, s[24:27], 0 offen offset:2304')
    W = 16
    for i in range(8):
        if i: a(f's_mov_b32 s{32+i}, {i*13824}')
        a(f'buffer_load_dwordx4 {vr(W+4*i,4)}, v2, s[20:23], {"s%d"%(32+i) if i else 0} offen')
    S = 48
    T = 64
    ACC = 80
    U = 96
    a('s_mov_b32 s40, 0xffff0000')
    a(f's_mov_b32 s41, {0xbfb8aa3b:#x}')
    a('s_waitcnt vmcnt(8)')
    for j in range(8):
        a(f'v_lshlrev_b32 v{S+2*j}, 16, v{8+j}')
        a(f'v_and_b32 v{S+2*j+1}, s40, v{8+j}')
    for j in range(16): a(f'v_mul_f32 v{T+j}, s41, v{S+j}')
    for j in range(16): a(f'v_exp_f32 v{T+j}, v{T+j}')
    for j in range(16): a(f'v_add_f32 v{T+j}, 1.0, v{T+j}')
    for j in range(16): a(f'v_rcp_f32 v{T+j}, v{T+j}')
    for j in range(16): a(f'v_mul_f32 v{T+j}, v{T+j}, v{S+j}')
    for j in range(8): a(f'v_cvt_pk_bf16_f32 v{8+j}, v{T+2*j}, v{T+2*j+1}')
    for j in range(8):
        a(f'v_lshlrev_b32 v{S+2*j}, 16, v{8+j}')
        a(f'v_and_b32 v{S+2*j+1}, s40, v{8+j}')
    for j in range(16): a(f'v_mov_b32 v{ACC+j}, 0')
    for i in range(8):
        a(f's_waitcnt vmcnt({7-i})')
        for j in range(4):
            a(f'v_lshlrev_b32 v{U+2*j}, 16, v{W+4*i+j}')
            a(f'v_and_b32 v{U+2*j+1}, s40, v{W+4*i+j}')
        for b in range(2):
            sidx = S + b*8 + i
            sp = sidx & ~1
            sel = 'op_sel:[0,1,0] op_sel_hi:[1,1,1]' if sidx & 1 else 'op_sel_hi:[1,0,1]'
            for j in range(4):
                d = ACC + b*8 + 2*j
                a(f'v_pk_fma_f32 {vr(d,2)}, {vr(U+2*j,2)}, {vr(sp,2)}, {vr(d,2)} {sel}')
    for j in range(8): a(f'v_permlane32_swap_b32 v{ACC+j}, v{ACC+8+j}')
    for j in range(8): a(f'v_add_f32 v{ACC+j}, v{ACC+j}, v{ACC+8+j}')
    for j in range(4): a(f'v_permlane16_swap_b32 v{ACC+j}, v{ACC+4+j}')
    for j in range(4): a(f'v_add_f32 v{ACC+j}, v{ACC+j}, v{ACC+4+j}')
    for j in range(4): a(f'v_add_f32_dpp v{ACC+4+j}, v{ACC+j}, v{ACC+j} row_ror:8 row_mask:0xf bank_mask:0xf')
    a(f'''
    v_lshrrev_b32 v1, 6, v0
    v_lshlrev_b32 v1, 9, v1
    v_and_b32 v2, 32, v0
    v_lshlrev_b32 v2, 3, v2
    v_and_b32 v3, 7, v0
    v_lshlrev_b32 v3, 5, v3
    v_add3_u32 v1, v1, v2, v3
    v_and_b32 v2, 16, v0
    v_add_u32 v1, v1, v2
    ds_write_b128 v1, {vr(ACC+4,4)}
    s_waitcnt lgkmcnt(0)
    s_barrier
    v_cmp_gt_u32 vcc, 32, v0
    s_and_saveexec_b64 s[34:35], vcc
    s_cbranch_execz K0_done
    v_lshlrev_b32 v1, 4, v0
    ''')
    for w in range(9): a(f'ds_read_b128 {vr(8+4*w,4)}, v1 offset:{w*512}')
    a(f'''
    s_lshl_b32 s16, s12, 1
    s_add_u32 s16, s16, s14
    s_mul_i32 s16, s16, {2*3456*4}
    s_lshl_b32 s17, s13, 8
    s_add_u32 s16, s16, s17
    v_lshrrev_b32 v2, 4, v0
    v_mul_u32_u24 v2, {3456*4}, v2
    v_and_b32 v3, 15, v0
    v_lshlrev_b32 v3, 4, v3
    v_add3_u32 v2, v2, v3, s16
    s_waitcnt lgkmcnt(0)
    ''')
    for w in range(1, 9):
        for h in range(2):
            a(f'v_pk_add_f32 {vr(8+2*h,2)}, {vr(8+2*h,2)}, {vr(8+4*w+2*h,2)}')
    a('buffer_store_dwordx4 v[8:11], v2, s[28:31], 0 offen')
    a('K0_done:')
    endpgm(a)
    return name, (216, 1, 1), (576, 1, 1), 9*512, 104

def rnd_pair(a, x0, x1, tmp, mask):
    a(f'v_cvt_pk_bf16_f32 v{tmp}, v{x0}, v{x1}')
    a(f'v_lshlrev_b32 v{x0}, 16, v{tmp}')
    a(f'v_and_b32 v{x1}, {mask}, v{tmp}')

def rnd_many(a, base, n, tmp, mask):
    for j in range(n//2): a(f'v_cvt_pk_bf16_f32 v{tmp+j}, v{base+2*j}, v{base+2*j+1}')
    for j in range(n//2):
        a(f'v_lshlrev_b32 v{base+2*j}, 16, v{tmp+j}')
        a(f'v_and_b32 v{base+2*j+1}, {mask}, v{tmp+j}')

def red8(a, v, t):
    a(f'v_add_f32_dpp v{t}, v{v}, v{v} quad_perm:[1,0,3,2] row_mask:0xf bank_mask:0xf')
    a(f'v_add_f32_dpp v{v}, v{t}, v{t} quad_perm:[2,3,0,1] row_mask:0xf bank_mask:0xf')
    a(f'v_add_f32_dpp v{t}, v{v}, v{v} row_half_mirror row_mask:0xf bank_mask:0xf')
    a(f'v_mov_b32 v{v}, v{t}')

def k1(a):
    name = 'k1_ln_kernel'
    header(a, name)
    L_MOD = 0; L_ST = 9216; L_TR = 10240
    a(f'''
    s_cmp_ge_u32 s2, 264
    s_cbranch_scc1 K1_done
    s_load_dwordx4 s[4:7], s[0:1], 0
    s_load_dwordx2 s[8:9], s[0:1], 88
    s_lshl_b32 s10, s2, 3
    s_cmp_ge_u32 s2, 256
    s_cselect_b32 s11, 1, 0
    s_lshr_b32 s12, s2, 7
    s_sub_u32 s13, s2, 256
    s_lshr_b32 s13, s13, 2
    s_cmp_eq_u32 s11, 1
    s_cselect_b32 s12, s13, s12
    s_lshl_b32 s13, s11, 11
    s_sub_u32 s13, s10, s13
    s_mul_i32 s13, s13, 2304
    v_and_b32 v1, 63, v0
    v_lshrrev_b32 v2, 6, v0
    v_lshrrev_b32 v3, 3, v1
    v_and_b32 v4, 7, v0
    v_mul_u32_u24 v5, 2304, v3
    v_lshlrev_b32 v6, 8, v2
    v_lshlrev_b32 v7, 4, v4
    v_add3_u32 v5, v5, v6, v7
    s_lshl_b32 s14, s11, 1
    s_add_u32 s14, s14, s12
    s_mul_i32 s15, s14, {3456*4}
    v_lshlrev_b32 v8, 4, v0
    s_waitcnt lgkmcnt(0)
    s_cmp_eq_u32 s11, 1
    s_cselect_b32 s4, s6, s4
    s_cselect_b32 s5, s7, s5
    s_mov_b32 s22, {2048*2304}
    s_cselect_b32 s22, {64*2304}, s22
    s_mov_b32 s20, s4
    s_mov_b32 s21, s5
    s_mov_b32 s23, 0x20000
    ''')
    srd(a, 24, 8, 9, SZ_MODP, WS_MODP)
    srd(a, 28, 8, 9, SZ_H, WS_H)
    srd(a, 32, 8, 9, SZ_GATE, WS_GATE)
    X = 16
    F = 24
    a(f'''
    buffer_load_dwordx4 {vr(X,4)}, v5, s[20:23], s13 offen
    buffer_load_dwordx4 {vr(X+4,4)}, v5, s[20:23], s13 offen offset:128
    s_add_u32 s16, s15, {4*3456*4}
    buffer_load_dwordx4 v[40:43], v8, s[24:27], s15 offen
    buffer_load_dwordx4 v[44:47], v8, s[24:27], s16 offen
    s_mov_b32 s40, 0xffff0000
    ''')
    a(f'''
    s_and_b32 s17, s2, 127
    s_cmp_eq_u32 s17, 0
    s_cselect_b32 s18, 1, 0
    s_cmp_eq_u32 s2, 260
    s_cselect_b32 s18, 1, s18
    s_cmp_eq_u32 s18, 0
    s_cbranch_scc1 K1_nogate
    v_cmp_gt_u32 vcc, 288, v0
    s_and_saveexec_b64 s[36:37], vcc
    s_cbranch_execz K1_gate_end
    s_add_u32 s17, s15, {2304*4}
    s_add_u32 s18, s16, {2304*4}
    buffer_load_dwordx4 v[48:51], v8, s[24:27], s17 offen
    buffer_load_dwordx4 v[52:55], v8, s[24:27], s18 offen
    s_mul_i32 s17, s14, 2304
    v_lshlrev_b32 v9, 3, v0
    s_waitcnt vmcnt(0)
    v_pk_add_f32 v[48:49], v[48:49], v[52:53]
    v_pk_add_f32 v[50:51], v[50:51], v[54:55]
    v_cvt_pk_bf16_f32 v48, v48, v49
    v_cvt_pk_bf16_f32 v49, v50, v51
    buffer_store_dwordx2 v[48:49], v9, s[32:35], s17 offen
    s_waitcnt vmcnt(0)
    K1_gate_end:
    s_mov_b64 exec, s[36:37]
    K1_nogate:
    s_waitcnt vmcnt(2)
    ''')
    for j in range(8):
        a(f'v_lshlrev_b32 v{F+2*j}, 16, v{X+j}')
        a(f'v_and_b32 v{F+2*j+1}, s40, v{X+j}')
    T = 56
    for j in range(4): a(f'v_pk_add_f32 {vr(T+2*j,2)}, {vr(F+2*j,2)}, {vr(F+8+2*j,2)}')
    for j in range(2): a(f'v_pk_add_f32 {vr(T+2*j,2)}, {vr(T+2*j,2)}, {vr(T+4+2*j,2)}')
    a(f'v_pk_add_f32 {vr(T,2)}, {vr(T,2)}, {vr(T+2,2)}')
    a(f'v_add_f32 v10, v{T}, v{T+1}')
    red8(a, 10, 11)
    a(f'v_mul_f32 v12, {f32hex(-1/128)}, v10')
    a('v_mov_b32 v13, v12')
    for j in range(8): a(f'v_pk_add_f32 {vr(T+2*j,2)}, {vr(F+2*j,2)}, v[12:13]')
    a(f'v_pk_mul_f32 v[14:15], {vr(T,2)}, {vr(T,2)}')
    for j in range(1, 8): a(f'v_pk_fma_f32 v[14:15], {vr(T+2*j,2)}, {vr(T+2*j,2)}, v[14:15]')
    a('v_add_f32 v11, v14, v15')
    red8(a, 11, 14)
    a(f'''
    v_lshlrev_b32 v14, 6, v2
    v_lshl_add_u32 v14, v3, 3, v14
    ds_write_b64 v14, v[10:11] offset:{L_ST}
    s_waitcnt vmcnt(0)
    v_pk_add_f32 v[40:41], v[40:41], v[44:45]
    v_pk_add_f32 v[42:43], v[42:43], v[46:47]
    v_cmp_le_u32 vcc, 288, v0
    v_mov_b32 v44, 0
    ''')
    rnd_many(a, 40, 4, 46, 's40')
    a('v_cndmask_b32 v44, v44, 1.0, vcc')
    for j in range(4): a(f'v_add_f32 v{40+j}, v{40+j}, v44')
    rnd_many(a, 40, 4, 46, 's40')
    a(f'''
    ds_write_b128 v8, v[40:43] offset:{L_MOD}
    s_waitcnt lgkmcnt(0)
    s_barrier
    v_lshlrev_b32 v14, 3, v3
    ''')
    ST = 72
    for w in range(9): a(f'ds_read_b64 {vr(ST+2*w,2)}, v14 offset:{L_ST+w*64}')
    M = 96
    a(f'''
    v_lshlrev_b32 v15, 9, v2
    v_lshl_add_u32 v15, v4, 5, v15
    ''')
    for j in range(2):
        for h in range(2):
            a(f'ds_read_b128 {vr(M+8*j+4*h,4)}, v15 offset:{L_MOD+j*256+h*16}')
    for j in range(2):
        for h in range(2):
            a(f'ds_read_b128 {vr(M+16+8*j+4*h,4)}, v15 offset:{L_MOD+4608+j*256+h*16}')
    a('s_waitcnt lgkmcnt(8)')
    a(f'v_add_f32 v10, v{ST}, v{ST+2}')
    a(f'v_add_f32 v11, v{ST+1}, v{ST+3}')
    for w in range(2, 9):
        a(f'v_add_f32 v10, v10, v{ST+2*w}')
        a(f'v_add_f32 v11, v11, v{ST+2*w+1}')
    a(f'v_mul_f32 v10, {f32hex(1/1152)}, v10')
    a(f's_mov_b32 s41, {f32hex(1/128)}')
    a('v_mov_b32 v12, 0')
    for w in range(9):
        a(f'v_fma_f32 v13, v{ST+2*w}, s41, -v10')
        a(f'v_fmac_f32 v12, v13, v13')
    a(f'''
    s_mov_b32 s42, {f32hex(128.0)}
    v_fma_f32 v11, v12, s42, v11
    v_mul_f32 v11, {f32hex(1/1152)}, v11
    ''')
    rnd_pair(a, 10, 11, 12, 's40')
    a(f'''
    v_add_f32 v11, {f32hex(1e-5)}, v11
    v_cvt_pk_bf16_f32 v11, v11, v11
    v_lshlrev_b32 v11, 16, v11
    v_sqrt_f32 v11, v11
    v_cvt_pk_bf16_f32 v11, v11, v11
    v_lshlrev_b32 v11, 16, v11
    v_rcp_f32 v12, v11
    v_sub_f32 v10, 0, v10
    v_mov_b32 v11, v10
    v_mov_b32 v13, v12
    ''')
    for j in range(8): a(f'v_pk_add_f32 {vr(F+2*j,2)}, {vr(F+2*j,2)}, v[10:11]')
    rnd_many(a, F, 16, T, 's40')
    for j in range(8): a(f'v_pk_mul_f32 {vr(F+2*j,2)}, {vr(F+2*j,2)}, v[12:13]')
    rnd_many(a, F, 16, T, 's40')
    a('s_waitcnt lgkmcnt(0)')
    for j in range(8): a(f'v_pk_mul_f32 {vr(F+2*j,2)}, {vr(F+2*j,2)}, {vr(M+16+2*j,2)}')
    rnd_many(a, F, 16, T, 's40')
    for j in range(8): a(f'v_pk_add_f32 {vr(F+2*j,2)}, {vr(F+2*j,2)}, {vr(M+2*j,2)}')
    for j in range(8): a(f'v_cvt_pk_bf16_f32 v{X+j}, v{F+2*j}, v{F+2*j+1}')
    a(f'''
    v_xor_b32 v10, v3, v4
    v_lshlrev_b32 v11, 11, v2
    v_lshl_add_u32 v12, v4, 3, v10
    v_lshl_add_u32 v12, v12, 4, v11
    v_lshl_add_u32 v13, v3, 3, v10
    v_lshl_add_u32 v13, v13, 4, v11
    ds_write_b128 v12, {vr(X,4)} offset:{L_TR}
    ds_write_b128 v12, {vr(X+4,4)} offset:{L_TR+1024}
    v_lshlrev_b32 v14, 12, v2
    v_lshl_add_u32 v14, v3, 8, v14
    v_lshl_add_u32 v14, v4, 4, v14
    s_lshr_b32 s16, s10, 4
    s_mul_i32 s16, s16, 36864
    s_and_b32 s17, s10, 8
    s_lshl_b32 s17, s17, 4
    s_add_u32 s16, s16, s17
    s_waitcnt lgkmcnt(0)
    ds_read_b128 {vr(F,4)}, v13 offset:{L_TR}
    ds_read_b128 {vr(F+4,4)}, v13 offset:{L_TR+1024}
    s_waitcnt lgkmcnt(1)
    buffer_store_dwordx4 {vr(F,4)}, v14, s[28:31], s16 offen
    s_waitcnt lgkmcnt(0)
    buffer_store_dwordx4 {vr(F+4,4)}, v14, s[28:31], s16 offen offset:2048
    K1_done:
    ''')
    endpgm(a)
    return name, (264, 1, 1), (576, 1, 1), L_TR + 9*2048, 128

def build(kernels, path):
    a = Asm()
    a.raw('.amdgcn_target "amdgcn-amd-amdhsa--gfx950"\n.text')
    infos = [k(a) for k in kernels]
    body = a.render(verbose=True)
    head = '; MM-DiT joint-attention block, generated by dev/gen.py (hand-written generator)\n'
    for n, g, b, lds, vg in infos:
        head += f'; @launch kernel={n} grid=({g[0]},{g[1]},{g[2]}) block=({b[0]},{b[1]},{b[2]}) lds={lds}\n'
    tail = '.section .rodata,"a"\n'
    import gen2
    for lab, tab in gen2.TABLES:
        tail += f'.p2align 6\n{lab}:\n'
        for i in range(0, len(tab), 8):
            tail += '.long ' + ', '.join('%#x' % v for v in tab[i:i+8]) + '\n'
    seen = set()
    for n, g, b, lds, vg in infos:
        if n in seen: continue
        seen.add(n)
        tail += '.p2align 6\n' + kdesc(n, vg)
    open(path, 'w').write(head + body + tail)

if __name__ == '__main__':
    from gen2 import KERNELS
    build(KERNELS, sys.argv[1] if len(sys.argv) > 1 else 'standalone__mm_dit__diffusion.s')
```
